```python
import torch

def _softmax(x, axis=-1):
    return torch.softmax(x, dim=axis)
def _gelu(x):
    return torch.nn.functional.gelu(x, approximate="tanh")
def _silu(x):
    return torch.nn.functional.silu(x)
def _sigmoid(x):
    return torch.sigmoid(x)
def _layernorm(x, axis=-1, eps=1e-5):
    m = x.mean(dim=axis, keepdim=True)
    v = x.var(dim=axis, keepdim=True, unbiased=False)
    return (x - m) / torch.sqrt(v + eps)
def _scatter_add(tgt, idx, src, axis=0):
    return tgt.clone().index_add_(axis, idx, src)
def _segment_sum(src, seg, n):
    out = torch.zeros((n,) + src.shape[1:], dtype=src.dtype)
    return out.index_add_(0, seg, src)
def _pad(x, pw):
    flat = tuple(v for pair in reversed(pw) for v in pair)
    return torch.nn.functional.pad(x, flat)

kernel_name = 'sequential_preLN__linear_attn_block__mixer_s_mlp__prompt'

def setup_inputs():

    _w = (lambda a: (lambda t: t.to(torch.bfloat16) if t.is_floating_point() else t)(torch.as_tensor(a)))
    def _A_setup():
        B, S, D = 1, 2048, 640
        return {
            "x": _w((lambda *s: torch.randn(*s, dtype=torch.bfloat16) * 0.05)(B, S, D)),
            "wqkv": _w((lambda *s: torch.randn(*s, dtype=torch.bfloat16) * 0.05)(D, 3 * D)),
            "wo": _w((lambda *s: torch.randn(*s, dtype=torch.bfloat16) * 0.05)(D, D)),
        }
    _A_in = _A_setup()

    def _B_setup():
        B, S, D, F = 1, 2048, 640, 1536
        return {
            "x":  _w((lambda *s: torch.randn(*s, dtype=torch.bfloat16) * 0.05)(B, S, D)),
            "w1": _w((lambda *s: torch.randn(*s, dtype=torch.bfloat16) * 3.2)(D, D) * (D ** -0.5)),
            "w2": _w((lambda *s: torch.randn(*s, dtype=torch.bfloat16) * 3.2)(D, D) * (D ** -0.5)),
            "w3": _w((lambda *s: torch.randn(*s, dtype=torch.bfloat16) * 3.2)(D, F) * (D ** -0.5)),
            "w4": _w((lambda *s: torch.randn(*s, dtype=torch.bfloat16) * 3.2)(F, D) * (F ** -0.5)),
        }
    _B_in = _B_setup()

    return {
        "A_x": _A_in["x"],
        "A_wqkv": _A_in["wqkv"],
        "A_wo": _A_in["wo"],
        "B_x": _B_in["x"],
        "B_w1": _B_in["w1"],
        "B_w2": _B_in["w2"],
        "B_w3": _B_in["w3"],
        "B_w4": _B_in["w4"],
    }

def reference(A_x, A_wqkv, A_wo, B_x, B_w1, B_w2, B_w3, B_w4):
    def _A_ref(x, wqkv, wo):
        B, S, D = x.shape
        H = 32; Dh = D // H
        qkv = (lambda x, *d: x.permute(*d))((x @ wqkv).reshape(B, S, 3, H, Dh), 2, 0, 3, 1, 4)
        q, k, v = qkv[0], qkv[1], qkv[2]
        phi = lambda t: torch.where(t > 0, t + 1, torch.exp(t)) + 1e-6
        pq, pk = phi(q), phi(k)
        kv = torch.einsum("bhsd,bhse->bhde", pk, v)
        z = torch.einsum("bhsd->bhd", pk)
        num = torch.einsum("bhqd,bhde->bhqe", pq, kv)
        den = torch.einsum("bhqd,bhd->bhq", pq, z)[..., None] + 1e-6
        o = num / den
        return (lambda x, *d: x.permute(*d))(o, 0, 2, 1, 3).reshape(B, S, D) @ wo

    def _B_ref(x, w1, w2, w3, w4):
        B, S, D = x.shape
        h = _gelu(_layernorm(x, axis=-1) @ w1)
        c = D // 4
        g0 = _pad(h[:, :, 0*c:1*c], ((0, 0), (1, 0), (0, 0)))[:, :S, :]
        g1 = _pad(h[:, :, 1*c:2*c], ((0, 0), (0, 1), (0, 0)))[:, 1:, :]
        g2 = _pad(h[:, :, 2*c:3*c], ((0, 0), (2, 0), (0, 0)))[:, :S, :]
        g3 = _pad(h[:, :, 3*c:   ], ((0, 0), (0, 2), (0, 0)))[:, 2:, :]
        hs = torch.concatenate([g0, g1, g2, g3], axis=-1) @ w2
        x1 = x + hs
        h2 = _gelu(_layernorm(x1, axis=-1) @ w3) @ w4
        return x1 + h2

    x = A_x
    h = x + _A_ref(_layernorm(x, axis=-1), A_wqkv, A_wo)
    h2 = h + _B_ref(_layernorm(h, axis=-1), B_w1, B_w2, B_w3, B_w4)
    return h2
```

```python
import sys
NAME='sequential_preLN__linear_attn_block__mixer_s_mlp__prompt'
M=2048; D=640; F=1536
WS_PQ=0; WS_O=WS_PQ+M*D*2; WS_H=WS_O+M*D*2; WS_XB=WS_H+M*D*2; WS_HH=WS_XB+M*D*2
WS_X1=WS_HH+M*D*2; WS_G=WS_X1+M*D*2; WS_KVP=WS_G+M*F*2
out=[]
def e(s): out.append(s)
PTR={'x':16,'wqkv':18,'wo':20,'w1':24,'w2':26,'w3':28,'w4':30,'out':32,'ws':36}
def srd(r,ptr,nbytes,off=0):
    p=PTR[ptr]
    if off:
        e(f's_add_u32 s{r}, s{p}, {off}'); e(f's_addc_u32 s{r+1}, s{p+1}, 0')
    else:
        e(f's_mov_b32 s{r}, s{p}'); e(f's_mov_b32 s{r+1}, s{p+1}')
    e(f's_mov_b32 s{r+2}, {nbytes}'); e(f's_mov_b32 s{r+3}, 0x00020000')
def head(name):
    e('.p2align 8'); e(f'.globl {name}'); e(f'.type {name},@function'); e(f'{name}:')
    e('s_cmp_ge_u32 s2, 256'); e(f's_cbranch_scc1 {name}_end')
    e('s_load_dwordx16 s[16:31], s[0:1], 0'); e('s_load_dwordx4 s[32:35], s[0:1], 64'); e('s_load_dwordx2 s[36:37], s[0:1], 80')
def tail(name):
    e(f'{name}_end:'); e('s_endpgm')
def bfround(v,tmp=None):
    e(f'v_cvt_pk_bf16_f32 v{v}, v{v}, v{v}'); e(f'v_and_b32 v{v}, 0xffff0000, v{v}')
def unpack(dst,src):
    e(f'v_lshlrev_b32 v{dst}, 16, v{src}'); e(f'v_and_b32 v{dst+1}, 0xffff0000, v{src}')
def xreduce(v,tmp):
    for a in (250,251):
        e(f'ds_bpermute_b32 v{tmp}, v{a}, v{v}'); e('s_waitcnt lgkmcnt(0)'); e(f'v_add_f32 v{v}, v{v}, v{tmp}')
def gelu(v,t):
    e(f'v_mul_f32 v{t}, v{v}, v{v}'); e(f'v_fma_f32 v{t}, v{t}, s40, 1.0'); e(f'v_mul_f32 v{t}, v{t}, v{v}')
    e(f'v_mul_f32 v{t}, s41, v{t}'); e(f'v_exp_f32 v{t}, v{t}'); e('s_nop 0'); e(f'v_add_f32 v{t}, 1.0, v{t}')
    e(f'v_rcp_f32 v{t}, v{t}'); e('s_nop 0'); e(f'v_mul_f32 v{v}, v{v}, v{t}')
def ln_inplace(AR,n2,save=None):
    e('v_mov_b32 v240, 0')
    for i in range(n2):
        unpack(242,AR+i); e('v_add_f32 v240, v240, v242'); e('v_add_f32 v240, v240, v243')
    xreduce(240,244); e(f'v_mul_f32 v240, s42, v240')
    e('v_mov_b32 v241, 0')
    for i in range(n2):
        unpack(242,AR+i); e('v_sub_f32 v242, v242, v240'); e('v_sub_f32 v243, v243, v240')
        e('v_fmac_f32 v241, v242, v242'); e('v_fmac_f32 v241, v243, v243')
    xreduce(241,244); e('v_mul_f32 v241, s42, v241')
    bfround(240); bfround(241); e('v_add_f32 v241, 0x3727c5ac, v241'); bfround(241)
    e('v_sqrt_f32 v241, v241'); e('s_nop 0'); bfround(241); e('v_rcp_f32 v241, v241'); e('s_nop 0')
    for i in range(n2):
        unpack(242,AR+i); e('v_sub_f32 v242, v242, v240'); e('v_sub_f32 v243, v243, v240')
        e('v_cvt_pk_bf16_f32 v244, v242, v243'); unpack(242,244)
        e('v_mul_f32 v242, v242, v241'); e('v_mul_f32 v243, v243, v241')
        e(f'v_cvt_pk_bf16_f32 v{AR+i}, v242, v243')
def consts():
    e('s_mov_b32 s40, 0x3d372713'); e('s_mov_b32 s41, 0xc0135761'); e(f's_mov_b32 s42, 0x{0x3acccccd:x}')
def gemm(name,K,nt,Aptr,Aoff,lda,amode,Bptr,ldb,epi,NB=8):
    AR=256-0
    AR=0; ks=K//32; n2=K//16*1
    n2=ks*4; ACC=200 if nt<=5 else None
    accbase=192; assert accbase+nt*4<=236 or True
    usea = nt*4>40 or K>640
    acc=lambda t:(f'a[{4*t}:{4*t+3}]' if usea else f'v[{accbase+4*t}:{accbase+4*t+3}]')
    rowb=32*nt; CH=128; nch=K//CH; chb=CH*rowb; R=min(nch,(150*1024)//chb)
    head(name); consts()
    e('v_and_b32 v252, 63, v0'); e('v_lshrrev_b32 v253, 6, v0'); e('s_nop 0'); e('v_readfirstlane_b32 s3, v253')
    e('v_and_b32 v253, 15, v252'); e('v_lshrrev_b32 v254, 4, v252')
    e('v_xor_b32 v250, 16, v252'); e('v_lshlrev_b32 v250, 2, v250'); e('v_xor_b32 v251, 32, v252'); e('v_lshlrev_b32 v251, 2, v251')
    e(f's_lshr_b32 s4, s2, 3'); e(f's_and_b32 s5, s2, 7')
    e('s_lshl_b32 s6, s4, 6'); e('s_lshl_b32 s7, s3, 4'); e('s_add_u32 s6, s6, s7')
    e('v_add_u32 v255, s6, v253')
    e('s_waitcnt lgkmcnt(0)')
    srd(44,Aptr,M*lda,Aoff); srd(48,Bptr,K*ldb)
    BO=n2
    assert BO+nt<=accbase or usea
    for i in range(nt):
        e(f's_mul_i32 s8, s3, {nt*1024}'); e(f'v_lshlrev_b32 v240, 4, v252'); e(f'v_add_u32 v240, s8, v240'); e(f'v_add_u32 v240, {i*1024}, v240')
        e(f'v_cvt_f32_u32 v241, v240'); e(f's_mov_b32 s9, 0x{__import__("struct").unpack("<I",__import__("struct").pack("<f",1.0/rowb))[0]:x}')
        e('v_add_f32 v241, 0.5, v241'); e('v_mul_f32 v241, s9, v241'); e('v_cvt_u32_f32 v241, v241')
        e(f's_movk_i32 s9, {rowb}'); e('v_mul_lo_u32 v242, v241, s9'); e('v_sub_u32 v242, v240, v242')
        if epi=='qkv':
            e('v_cmp_le_u32 vcc, 160, v242'); e('s_nop 1'); e('v_cndmask_b32 v243, 0, 1, vcc'); e('v_cmp_le_u32 vcc, 320, v242'); e('s_nop 1'); e('v_addc_co_u32 v243, vcc, 0, v243, vcc')
            e('s_movk_i32 s9, 1120'); e('v_mad_u32_u24 v242, v243, s9, v242')
        e(f's_movk_i32 s9, {ldb}'); e(f'v_mad_u32_u24 v{BO+i}, v241, s9, v242')
    e(f's_mul_i32 s10, s5, {160 if epi=="qkv" else rowb}')
    def dma(c):
        e(f's_add_u32 s11, s10, {c*CH*ldb}')
        for i in range(nt):
            e(f's_mul_i32 s8, s3, {nt*1024}'); e(f's_add_u32 s8, s8, {(c%R)*chb+i*1024}'); e('s_mov_b32 m0, s8'); e('s_nop 0')
            e(f'buffer_load_dwordx4 v{BO+i}, s[48:51], s11 offen lds')
    for c in range(R): dma(c)
    e('v_and_b32 v240, 1, v254');
    for j in range(2):
        e(f'v_xor_b32 v241, {j}, v240'); e('v_lshlrev_b32 v241, 3, v241'); e('v_lshl_add_u32 v241, v254, 4, v241')
        e(f's_movk_i32 s9, {lda}'); e(f'v_mad_u32_u24 v{244+j}, v255, s9, v241')
    for s in range(ks):
        sh=0
        if amode=='shift': sh=[-1,1,-2,2][s//5]*lda
        if sh<0:
            e(f'v_subrev_u32 v246, {-sh}, v244'); e(f'v_subrev_u32 v247, {-sh}, v245'); a0,a1,o=246,247,0
        else: a0,a1,o=244,245,sh
        e(f'buffer_load_dwordx2 v[{AR+4*s}:{AR+4*s+1}], v{a0}, s[44:47], 0 offen offset:{64*s+o}')
        e(f'buffer_load_dwordx2 v[{AR+4*s+2}:{AR+4*s+3}], v{a1}, s[44:47], 0 offen offset:{64*s+o}')
    for t in range(nt):
        for r in range(4):
            e(f'v_accvgpr_write_b32 a{4*t+r}, 0' if usea else f'v_mov_b32 v{accbase+4*t+r}, 0')
    e('s_waitcnt vmcnt(0)')
    if amode in('ln','ln2'): ln_inplace(AR,n2)
    if amode=='ln2':
        e('s_cmp_lg_u32 s5, 0'); e(f's_cbranch_scc1 {name}_nx'); srd(52,'ws',M*D*2,WS_XB)
        for s in range(ks):
            e(f'buffer_store_dwordx2 v[{AR+4*s}:{AR+4*s+1}], v244, s[52:55], 0 offen offset:{64*s}') if False else None
        e('v_and_b32 v240, 1, v254')
        for j in range(2):
            e(f'v_xor_b32 v241, {j}, v240'); e('v_lshlrev_b32 v241, 3, v241'); e('v_lshl_add_u32 v241, v254, 4, v241')
            e(f's_movk_i32 s9, {lda}'); e(f'v_mad_u32_u24 v{246+j}, v255, s9, v241')
        for s in range(ks):
            e(f'buffer_store_dwordx2 v[{AR+4*s}:{AR+4*s+1}], v246, s[52:55], 0 offen offset:{64*s}')
            e(f'buffer_store_dwordx2 v[{AR+4*s+2}:{AR+4*s+3}], v247, s[52:55], 0 offen offset:{64*s}')
        e('s_waitcnt vmcnt(0)'); e(f'{name}_nx:'); ln_inplace(AR,n2)
    e('v_and_b32 v240, 1, v254'); e('v_lshrrev_b32 v241, 2, v253'); e('v_and_b32 v242, 3, v253'); e('v_lshlrev_b32 v242, 3, v242')
    for j in range(2):
        e(f'v_xor_b32 v243, {j}, v240'); e('v_lshlrev_b32 v243, 2, v243'); e('v_lshl_add_u32 v243, v254, 3, v243'); e('v_add_u32 v243, v243, v241')
        e(f's_movk_i32 s9, {rowb}'); e(f'v_mad_u32_u24 v{244+j}, v243, s9, v242')
    pend=0
    for c in range(nch):
        inflight=min(nch-1,max(R-1,c-2+R))-c
        if c>=1: e(f's_waitcnt vmcnt({max(0,inflight)*nt})')
        e('s_barrier')
        if c>=1 and c-1+R<nch: dma(c-1+R)
        e(f'v_add_u32 v246, {(c%R)*chb}, v244'); e(f'v_add_u32 v247, {(c%R)*chb}, v245')
        for s4 in range(4):
            s=c*4+s4
            for t in range(nt):
                b=224+4*(t%3)
                e(f'ds_read_b64_tr_b16 v[{b}:{b+1}], v246 offset:{s4*32*rowb+t*32}')
                e(f'ds_read_b64_tr_b16 v[{b+2}:{b+3}], v247 offset:{s4*32*rowb+t*32}')
                e('s_waitcnt lgkmcnt(0)')
                e(f'v_mfma_f32_16x16x32_bf16 {acc(t)}, v[{b}:{b+3}], v[{AR+4*s}:{AR+4*s+3}], {acc(t)}')
    e('s_nop 7'); e('s_nop 7')
    def geta(t,r,v):
        e(f'v_accvgpr_read_b32 v{v}, a{4*t+r}' if usea else f'v_mov_b32 v{v}, v{accbase+4*t+r}')
    if epi!='qkv':
        ldc=F*2 if epi=='g' else D*2
        e(f's_mul_i32 s10, s5, {rowb}'); e('v_lshlrev_b32 v241, 3, v254'); e('v_add_u32 v241, s10, v241'); e(f's_movk_i32 s9, {ldc}'); e('v_mad_u32_u24 v240, v255, s9, v241')
        dst={'h':('ws',WS_H),'hh':('ws',WS_HH),'x1':('ws',WS_X1),'g':('ws',WS_G),'out':('out',0)}[epi]
        srd(52,dst[0],M*ldc,dst[1])
        if epi=='h': srd(56,'x',M*D*2)
        if epi=='x1': srd(56,'ws',M*D*2,WS_XB)
        if epi=='out': srd(56,'ws',M*D*2,WS_X1); srd(60,'ws',M*D*2,WS_H)
        for t in range(nt):
            if epi in('h','x1','out'): e(f'buffer_load_dwordx2 v[228:229], v240, s[56:59], 0 offen offset:{32*t}')
            if epi=='out': e(f'buffer_load_dwordx2 v[230:231], v240, s[60:63], 0 offen offset:{32*t}')
            for r in range(4): geta(t,r,224+r); bfround(224+r)
            if epi in('hh','g'):
                for r in range(4): gelu(224+r,232)
            if epi in('h','x1','out'):
                e('s_waitcnt vmcnt(0)')
                for p in range(2):
                    unpack(232,228+p); e(f'v_add_f32 v{224+2*p}, v{224+2*p}, v232'); e(f'v_add_f32 v{225+2*p}, v{225+2*p}, v233')
                    if epi=='out':
                        bfround(224+2*p); bfround(225+2*p)
                        unpack(232,230+p); e(f'v_add_f32 v{224+2*p}, v{224+2*p}, v232'); e(f'v_add_f32 v{225+2*p}, v{225+2*p}, v233')
            e('v_cvt_pk_bf16_f32 v224, v224, v225'); e('v_cvt_pk_bf16_f32 v225, v226, v227')
            e(f'buffer_store_dwordx2 v[224:225], v240, s[52:55], 0 offen offset:{32*t}'); e('s_waitcnt vmcnt(0)')
    else:
        srd(52,'ws',M*D*2,WS_PQ)
        e('s_mul_i32 s10, s5, 160'); e('v_lshlrev_b32 v241, 3, v254'); e('v_add_u32 v242, s10, v241'); e('s_movk_i32 s9, 1280'); e('v_mad_u32_u24 v240, v255, s9, v242')
        e('v_lshl_add_u32 v243, s3, 4, v253'); e('s_movk_i32 s9, 320'); e('v_mad_u32_u24 v243, v243, s9, v241')
        e('s_barrier')
        for t in range(15):
            for r in range(4):
                geta(t,r,224+r); bfround(224+r)
                if t<10:
                    v=224+r
                    e(f'v_mul_f32 v232, 0x3fb8aa3b, v{v}'); e('v_exp_f32 v232, v232'); e(f'v_add_f32 v233, 1.0, v{v}')
                    e(f'v_cmp_lt_f32 vcc, 0, v{v}'); e('s_nop 1'); e(f'v_cndmask_b32 v{v}, v232, v233, vcc'); bfround(v); e(f'v_add_f32 v{v}, 0x358637bd, v{v}')
            e('v_cvt_pk_bf16_f32 v224, v224, v225'); e('v_cvt_pk_bf16_f32 v225, v226, v227')
            if t<5: e(f'buffer_store_dwordx2 v[224:225], v240, s[52:55], 0 offen offset:{32*t}')
            else: e(f'ds_write_b64 v243, v[224:225] offset:{32*(t-5)}')
        e('s_waitcnt vmcnt(0) lgkmcnt(0)'); e('s_barrier')
        e('v_lshrrev_b32 v241, 2, v253'); e('v_and_b32 v242, 3, v253'); e('v_lshlrev_b32 v242, 3, v242')
        e('s_mul_i32 s10, s3, 40'); e('v_add_u32 v242, s10, v242')
        for j in range(2):
            e(f'v_lshl_add_u32 v243, v254, 3, v241'); e(f'v_add_u32 v243, {4*j}, v243'); e('s_movk_i32 s9, 320'); e(f'v_mad_u32_u24 v{244+j}, v243, s9, v242')
        for q in range(24): e(f'v_mov_b32 v{q}, 0')
        for q in range(4): e(f'v_mov_b32 v{40+q}, 0x3f803f80')
        for s in range(2):
            for w_,co in ((28,0),(32,32),(36,160),(44,192)):
                e(f'ds_read_b64_tr_b16 v[{w_}:{w_+1}], v244 offset:{s*32*320+co}'); e(f'ds_read_b64_tr_b16 v[{w_+2}:{w_+3}], v245 offset:{s*32*320+co}')
            e('s_waitcnt lgkmcnt(0)')
            for dt in range(2):
                for et,br in enumerate((36,44,40)):
                    a=4*(dt*3+et); e(f'v_mfma_f32_16x16x32_bf16 v[{a}:{a+3}], v[{28+4*dt}:{31+4*dt}], v[{br}:{br+3}], v[{a}:{a+3}]')
        e('s_nop 7'); e('s_nop 7')
        srd(56,'ws',32*32*480*4,WS_KVP)
        e('s_lshl_b32 s10, s5, 2'); e('s_add_u32 s10, s10, s3'); e('s_lshl_b32 s11, s4, 5'); e('s_add_u32 s10, s10, s11'); e('s_mul_i32 s10, s10, 1920')
        e('v_lshlrev_b32 v241, 2, v253'); e('s_movk_i32 s9, 384'); e('v_mad_u32_u24 v241, v254, s9, v241'); e('v_add_u32 v241, s10, v241')
        e('s_mov_b64 s[12:13], exec')
        for dt in range(2):
            for et in range(3):
                a=4*(dt*3+et)
                lim={0:16,1:4,2:1}[et]
                e(f'v_cmp_gt_u32 vcc, {lim}, v253')
                if dt==1: e('v_cmp_eq_u32 s[14:15], 0, v254'); e('s_nop 1'); e('s_and_b64 vcc, vcc, s[14:15]')
                e('s_nop 3'); e('s_mov_b64 exec, vcc')
                for r in range(4):
                    e(f'buffer_store_dword v{a+r}, v241, s[56:59], 0 offen offset:{(dt*16+r)*96+[0,64,80][et]}')
                e('s_mov_b64 exec, s[12:13]')
    tail(name)
def kvo(name):
    head(name); e('s_waitcnt lgkmcnt(0)')
    e('s_lshr_b32 s4, s2, 3'); e('s_and_b32 s5, s2, 7')
    srd(44,'ws',32*32*480*4,WS_KVP); srd(48,'ws',M*D*2,WS_PQ); srd(52,'ws',M*D*2,WS_O)
    e('s_mul_i32 s10, s5, 7680'); e('v_lshlrev_b32 v1, 2, v0')
    for q in range(8): e(f'v_mov_b32 v{8+q}, 0')
    for p in range(32):
        e(f's_add_u32 s11, s10, {p*32*1920}')
        e('s_add_u32 s14, s11, 4096')
        for q in range(7): e(f'buffer_load_dword v{16+q}, v1, s[44:47], {"s11" if q<4 else "s14"} offen offset:{1024*(q%4)}')
        e('v_cmp_gt_u32 vcc, 128, v0'); e('s_and_saveexec_b64 s[12:13], vcc'); e('buffer_load_dword v23, v1, s[44:47], s14 offen offset:3072'); e('s_mov_b64 exec, s[12:13]')
        e('s_waitcnt vmcnt(0)')
        for q in range(8): e(f'v_add_f32 v{8+q}, v{8+q}, v{16+q}')
    for q in range(8):
        bfround(8+q)
        if q==7: e('v_cmp_gt_u32 vcc, 128, v0'); e('s_and_saveexec_b64 s[12:13], vcc')
        e(f'ds_write_b32 v1, v{8+q} offset:{1024*q}')
    e('s_mov_b64 exec, s[12:13]')
    e('v_lshrrev_b32 v2, 2, v0'); e('v_and_b32 v3, 3, v0'); e('s_lshl_b32 s6, s4, 6'); e('v_add_u32 v2, s6, v2')
    e('s_movk_i32 s9, 1280'); e('v_mul_u32_u24 v4, 40, v3'); e('v_mad_u32_u24 v4, v2, s9, v4'); e('s_mul_i32 s10, s5, 160'); e('v_add_u32 v4, s10, v4')
    for q in range(5): e(f'buffer_load_dwordx2 v[{30+2*q}:{31+2*q}], v4, s[48:51], 0 offen offset:{8*q}')
    e('s_movk_i32 s9, 1920'); e('v_mul_lo_u32 v5, v3, s9')
    e('s_waitcnt vmcnt(0) lgkmcnt(0)'); e('s_barrier')
    for q in range(10): unpack(40+2*q,30+q)
    for q in range(24): e(f'v_mov_b32 v{64+q}, 0')
    for d in range(20):
        for q in range(6): e(f'ds_read_b128 v[{100+4*q}:{103+4*q}], v5 offset:{d*96+16*q}')
        e('s_waitcnt lgkmcnt(0)')
        for q in range(21): e(f'v_fmac_f32 v{64+q}, v{40+d}, v{100+q}')
    bfround(84); e('v_add_f32 v84, 0x358637bd, v84'); bfround(84); e('v_rcp_f32 v84, v84'); e('s_nop 0')
    for q in range(20): bfround(64+q); e(f'v_mul_f32 v{64+q}, v{64+q}, v84')
    for q in range(10): e(f'v_cvt_pk_bf16_f32 v{30+q}, v{64+2*q}, v{65+2*q}')
    for q in range(5): e(f'buffer_store_dwordx2 v[{30+2*q}:{31+2*q}], v4, s[52:55], 0 offen offset:{8*q}')
    tail(name)
ks=[('k1_kernel',lambda n:gemm(n,640,15,'x',0,1280,'ln','wqkv',3840,'qkv')),
    ('k1b_kernel',kvo),
    ('k2_kernel',lambda n:gemm(n,640,5,'ws',WS_O,1280,'plain','wo',1280,'h')),
    ('k3_kernel',lambda n:gemm(n,640,5,'ws',WS_H,1280,'ln2','w1',1280,'hh')),
    ('k4_kernel',lambda n:gemm(n,640,5,'ws',WS_HH,1280,'shift','w2',1280,'x1')),
    ('k5_kernel',lambda n:gemm(n,640,12,'ws',WS_X1,1280,'ln','w3',3072,'g')),
    ('k6_kernel',lambda n:gemm(n,1536,5,'ws',WS_G,3072,'plain','w4',1280,'out'))]
hdr=[f'; @launch kernel={n} grid=(256,1,1) block=(256,1,1) lds=153600' for n,_ in ks]
e('.amdgcn_target "amdgcn-amd-amdhsa--gfx950"'); e('.text')
for n,f in ks: f(n)
e('.section .rodata,"a"')
for n,_ in ks:
    e('.p2align 6'); e(f'.amdhsa_kernel {n}')
    for l in ['next_free_vgpr 512','next_free_sgpr 102','accum_offset 256','group_segment_fixed_size 0','kernarg_size 88','user_sgpr_count 2','user_sgpr_kernarg_segment_ptr 1','system_sgpr_workgroup_id_x 1']: e('  .amdhsa_'+l)
    e('.end_amdhsa_kernel')
open(f'cdna_kernels/{NAME}.s','w').write('\n'.join(hdr+out)+'\n')
```

```python
import sys
NAME='sequential_preLN__linear_attn_block__mixer_s_mlp__prompt'
M=2048; D=640; F=1536
WS_PQ=0; WS_O=WS_PQ+M*D*2; WS_H=WS_O+M*D*2; WS_XB=WS_H+M*D*2; WS_HH=WS_XB+M*D*2
WS_X1=WS_HH+M*D*2; WS_G=WS_X1+M*D*2; WS_KVP=WS_G+M*F*2
out=[]
def e(s): out.append(s)
PTR={'x':16,'wqkv':18,'wo':20,'w1':24,'w2':26,'w3':28,'w4':30,'out':32,'ws':36}
def srd(r,ptr,nbytes,off=0):
    p=PTR[ptr]
    if off:
        e(f's_add_u32 s{r}, s{p}, {off}'); e(f's_addc_u32 s{r+1}, s{p+1}, 0')
    else:
        e(f's_mov_b32 s{r}, s{p}'); e(f's_mov_b32 s{r+1}, s{p+1}')
    e(f's_mov_b32 s{r+2}, {nbytes}'); e(f's_mov_b32 s{r+3}, 0x00020000')
def head(name):
    e('.p2align 8'); e(f'.globl {name}'); e(f'.type {name},@function'); e(f'{name}:')
    e('s_cmp_ge_u32 s2, 256'); e(f's_cbranch_scc1 {name}_end')
    e('s_load_dwordx16 s[16:31], s[0:1], 0'); e('s_load_dwordx4 s[32:35], s[0:1], 64'); e('s_load_dwordx2 s[36:37], s[0:1], 80')
def tail(name):
    e(f'{name}_end:'); e('s_endpgm')
def bfround(v,tmp=None):
    e(f'v_cvt_pk_bf16_f32 v{v}, v{v}, v{v}'); e(f'v_and_b32 v{v}, 0xffff0000, v{v}')
def unpack(dst,src):
    e(f'v_lshlrev_b32 v{dst}, 16, v{src}'); e(f'v_and_b32 v{dst+1}, 0xffff0000, v{src}')
def xreduce(v,tmp):
    for a in (250,251):
        e(f'ds_bpermute_b32 v{tmp}, v{a}, v{v}'); e('s_waitcnt lgkmcnt(0)'); e(f'v_add_f32 v{v}, v{v}, v{tmp}')
def gelu(v,t):
    e(f'v_mul_f32 v{t}, v{v}, v{v}'); e(f'v_fma_f32 v{t}, v{t}, s40, 1.0'); e(f'v_mul_f32 v{t}, v{t}, v{v}')
    e(f'v_mul_f32 v{t}, s41, v{t}'); e(f'v_exp_f32 v{t}, v{t}'); e('s_nop 0'); e(f'v_add_f32 v{t}, 1.0, v{t}')
    e(f'v_rcp_f32 v{t}, v{t}'); e('s_nop 0'); e(f'v_mul_f32 v{v}, v{v}, v{t}')
def ln_loop(name,tag,save=False):
    if tag.endswith('x'):
        e('v_mov_b32 v240, 0'); e('v_mov_b32 v241, 0'); e('s_mov_b32 s9, 0'); e(f'{name}_{tag}s:')
        e('v_add_u32 v237, s9, v236')
        for u in range(4): e(f'ds_read_b128 v[{4*u}:{4*u+3}], v237 offset:{1024*u}')
        e('s_waitcnt lgkmcnt(0)')
        for i in range(16):
            unpack(242,i); e('v_add_f32 v240, v240, v242'); e('v_add_f32 v240, v240, v243'); e('v_fmac_f32 v241, v242, v242'); e('v_fmac_f32 v241, v243, v243')
        e('s_add_u32 s9, s9, 4096'); e('s_cmp_lt_u32 s9, 20480'); e(f's_cbranch_scc1 {name}_{tag}s')
    xreduce(240,244); xreduce(241,244); e('v_mul_f32 v240, s42, v240'); e('v_mul_f32 v241, s42, v241'); e('v_fma_f32 v241, -v240, v240, v241'); e('v_max_f32 v241, 0, v241')
    bfround(240); bfround(241); e('v_add_f32 v241, 0x3727c5ac, v241'); bfround(241)
    e('v_sqrt_f32 v241, v241'); e('s_nop 0'); bfround(241); e('v_rcp_f32 v241, v241'); e('s_mov_b32 s9, 0'); e(f'{name}_{tag}n:')
    e('v_add_u32 v237, s9, v236')
    for u in range(4): e(f'ds_read_b128 v[{4*u}:{4*u+3}], v237 offset:{1024*u}')
    e('s_waitcnt lgkmcnt(0)')
    for i in range(16):
        unpack(242,i); e('v_sub_f32 v242, v242, v240'); e('v_sub_f32 v243, v243, v240')
        e('v_cvt_pk_bf16_f32 v244, v242, v243'); unpack(242,244)
        e('v_mul_f32 v242, v242, v241'); e('v_mul_f32 v243, v243, v241'); e(f'v_cvt_pk_bf16_f32 v{i}, v242, v243')
    for u in range(4): e(f'ds_write_b128 v237, v[{4*u}:{4*u+3}] offset:{1024*u}')
    if save:
        e('s_lshr_b32 s12, s9, 4'); e('v_add_u32 v246, s12, v248'); e('v_add_u32 v247, s12, v249')
        for u in range(4):
            e(f'buffer_store_dwordx2 v[{4*u}:{4*u+1}], v246, s[52:55], 0 offen offset:{64*u}'); e(f'buffer_store_dwordx2 v[{4*u+2}:{4*u+3}], v247, s[52:55], 0 offen offset:{64*u}')
    e('s_add_u32 s9, s9, 4096'); e('s_cmp_lt_u32 s9, 20480'); e(f's_cbranch_scc1 {name}_{tag}n'); e('s_waitcnt lgkmcnt(0)')
def consts():
    e('s_mov_b32 s40, 0x3d372713'); e('s_mov_b32 s41, 0xc0135761'); e(f's_mov_b32 s42, 0x{0x3acccccd:x}')
def gemm(name,K,nt,Aptr,Aoff,lda,amode,Bptr,ldb,epi,NB=8):
    import struct
    usea=True; acc=lambda t:f'a[{4*t}:{4*t+3}]'; accbase=0
    rowb=32*nt; CH=64 if nt>=12 else 128; SPC=CH//32; nch=K//CH; cnt=-(-CH*rowb//4096); slot=cnt*4096
    astream=K>640; ALDS=0 if astream else 81920; R=(153600-ALDS)//slot; R=min(R,4)
    head(name); consts()
    e('v_and_b32 v252, 63, v0'); e('v_lshrrev_b32 v253, 6, v0'); e('s_nop 0'); e('v_readfirstlane_b32 s3, v253')
    e('v_and_b32 v253, 15, v252'); e('v_lshrrev_b32 v254, 4, v252')
    e('v_xor_b32 v250, 16, v252'); e('v_lshlrev_b32 v250, 2, v250'); e('v_xor_b32 v251, 32, v252'); e('v_lshlrev_b32 v251, 2, v251')
    e(f's_lshr_b32 s4, s2, 3'); e(f's_and_b32 s5, s2, 7')
    e('s_lshl_b32 s6, s4, 6'); e('s_lshl_b32 s7, s3, 4'); e('s_add_u32 s6, s6, s7'); e('v_add_u32 v255, s6, v253')
    e('s_waitcnt lgkmcnt(0)')
    srd(44,Aptr,M*lda,Aoff); srd(48,Bptr,K*ldb)
    BO=192
    for i in range(cnt):
        e(f's_mul_i32 s8, s3, {cnt*1024}'); e(f'v_lshlrev_b32 v240, 4, v252'); e(f'v_add_u32 v240, s8, v240'); e(f'v_add_u32 v240, {i*1024}, v240')
        e(f'v_cvt_f32_u32 v241, v240'); e(f's_mov_b32 s9, 0x{struct.unpack("<I",struct.pack("<f",1.0/rowb))[0]:x}')
        e('v_add_f32 v241, 0.5, v241'); e('v_mul_f32 v241, s9, v241'); e('v_cvt_u32_f32 v241, v241')
        e(f's_movk_i32 s9, {rowb}'); e('v_mul_lo_u32 v242, v241, s9'); e('v_sub_u32 v242, v240, v242')
        if epi=='qkv':
            e('v_cmp_le_u32 vcc, 160, v242'); e('s_nop 1'); e('v_cndmask_b32 v243, 0, 1, vcc'); e('v_cmp_le_u32 vcc, 320, v242'); e('s_nop 1'); e('v_addc_co_u32 v243, vcc, 0, v243, vcc')
            e('s_movk_i32 s9, 1120'); e('v_mad_u32_u24 v242, v243, s9, v242')
        e(f's_movk_i32 s9, {ldb}'); e(f'v_mad_u32_u24 v{BO+i}, v241, s9, v242')
    e(f's_mul_i32 s10, s5, {160 if epi=="qkv" else rowb}')
    e(f's_mul_i32 s13, s3, {cnt*1024}'); e(f's_add_u32 s13, s13, {ALDS}')
    e('s_mov_b32 s14, 0')
    def dma():
        for i in range(cnt):
            e(f's_add_u32 s8, s13, s14'); e(f's_add_u32 m0, s8, {i*1024}'); e('s_nop 0')
            e(f'buffer_load_dwordx4 v{BO+i}, s[48:51], s10 offen lds')
        e(f's_add_u32 s10, s10, {CH*ldb}'); e(f's_add_u32 s14, s14, {slot}'); e(f's_cmp_ge_u32 s14, {R*slot}'); e('s_cselect_b32 s14, 0, s14')
    for c in range(R-1): dma()
    e('v_and_b32 v240, 1, v254')
    for j in range(2):
        e(f'v_xor_b32 v241, {j}, v240'); e('v_lshlrev_b32 v241, 3, v241'); e('v_lshl_add_u32 v241, v254, 4, v241')
        e(f's_movk_i32 s9, {lda}'); e(f'v_mad_u32_u24 v{248+j}, v255, s9, v241')
    if epi in('h','x1','out'):
        e(f's_mul_i32 s12, s5, {rowb}'); e('v_lshlrev_b32 v241, 3, v254'); e('v_add_u32 v241, s12, v241'); e(f's_movk_i32 s9, 1280'); e('v_mad_u32_u24 v240, v255, s9, v241')
        if epi=='h': srd(56,'x',M*D*2)
        if epi=='x1': srd(56,'ws',M*D*2,WS_XB)
        if epi=='out': srd(56,'ws',M*D*2,WS_X1); srd(60,'ws',M*D*2,WS_H)
        for t in range(nt):
            e(f'buffer_load_dwordx2 a[{64+2*t}:{65+2*t}], v240, s[56:59], 0 offen offset:{32*t}')
            if epi=='out': e(f'buffer_load_dwordx2 a[{96+2*t}:{97+2*t}], v240, s[60:63], 0 offen offset:{32*t}')
    for t in range(4*nt): e(f'v_accvgpr_write_b32 a{t}, 0')
    e('v_lshlrev_b32 v236, 4, v252'); e('s_mul_i32 s8, s3, 20480'); e('v_add_u32 v236, s8, v236')
    if not astream:
        for s_ in range(20):
            sh=[-1,1,-2,2][s_//5]*lda if amode=='shift' else 0
            if sh<0: e(f'v_subrev_u32 v246, {-sh}, v248'); e(f'v_subrev_u32 v247, {-sh}, v249'); a0,a1,o=246,247,0
            else: a0,a1,o=248,249,sh
            e(f'buffer_load_dwordx2 v[{4*s_}:{4*s_+1}], v{a0}, s[44:47], 0 offen offset:{64*s_+o}')
            e(f'buffer_load_dwordx2 v[{4*s_+2}:{4*s_+3}], v{a1}, s[44:47], 0 offen offset:{64*s_+o}')
        e('v_mov_b32 v240, 0'); e('v_mov_b32 v241, 0'); e('s_waitcnt vmcnt(0)')
        for s_ in range(20): e(f'ds_write_b128 v236, v[{4*s_}:{4*s_+3}] offset:{1024*s_}')
        e('s_waitcnt lgkmcnt(0)')
        if amode in('ln','ln2'):
            if amode=='ln2':
                srd(52,'ws',M*D*2,WS_XB); e('s_cmp_eq_u32 s5, 0'); e('s_cselect_b32 s54, s54, 0')
            ln_loop(name,'ax',save=(amode=='ln2'))
            if amode=='ln2': ln_loop(name,'bx')
    else:
        for u in range(SPC):
            e(f'buffer_load_dwordx2 v[{4*u}:{4*u+1}], v248, s[44:47], 0 offen offset:{64*u}'); e(f'buffer_load_dwordx2 v[{4*u+2}:{4*u+3}], v249, s[44:47], 0 offen offset:{64*u}')
    e('v_and_b32 v240, 1, v254'); e('v_lshrrev_b32 v241, 2, v253'); e('v_and_b32 v242, 3, v253'); e('v_lshlrev_b32 v242, 3, v242'); e(f'v_add_u32 v242, {ALDS}, v242')
    for j in range(2):
        e(f'v_xor_b32 v243, {j}, v240'); e('v_lshlrev_b32 v243, 2, v243'); e('v_lshl_add_u32 v243, v254, 3, v243'); e('v_add_u32 v243, v243, v241')
        e(f's_movk_i32 s9, {rowb}'); e(f'v_mad_u32_u24 v{244+j}, v243, s9, v242')
    e('s_mov_b32 s15, 0'); e('s_mov_b32 s12, 0')
    e(f'{name}_L:')
    e(f's_waitcnt vmcnt({0 if astream else (R-2)*cnt})'); e('s_barrier')
    if astream:
        for u in range(SPC): e(f'v_mov_b32 v{32+4*u}, v{4*u}'); e(f'v_mov_b32 v{33+4*u}, v{4*u+1}'); e(f'v_mov_b32 v{34+4*u}, v{4*u+2}'); e(f'v_mov_b32 v{35+4*u}, v{4*u+3}')
        e(f'v_add_u32 v248, {CH*2}, v248'); e(f'v_add_u32 v249, {CH*2}, v249')
        for u in range(SPC):
            e(f'buffer_load_dwordx2 v[{4*u}:{4*u+1}], v248, s[44:47], 0 offen offset:{64*u}'); e(f'buffer_load_dwordx2 v[{4*u+2}:{4*u+3}], v249, s[44:47], 0 offen offset:{64*u}')
    dma()
    e('v_add_u32 v246, s15, v244'); e('v_add_u32 v247, s15, v245')
    if not astream:
        e('v_add_u32 v237, s12, v236')
        for u in range(SPC): e(f'ds_read_b128 v[{32+4*u}:{35+4*u}], v237 offset:{1024*u}')
    seq=[(s4,t) for s4 in range(SPC) for t in range(nt)]; LA=5; NBUF=7
    def rd(i):
        s4,t=seq[i]; b=208-64+4*(i%NBUF)
        e(f'ds_read_b64_tr_b16 v[{b}:{b+1}], v246 offset:{s4*32*rowb+t*32}'); e(f'ds_read_b64_tr_b16 v[{b+2}:{b+3}], v247 offset:{s4*32*rowb+t*32}')
    for i in range(LA): rd(i)
    for i,(s4,t) in enumerate(seq):
        if i+LA<len(seq): rd(i+LA)
        e(f's_waitcnt lgkmcnt({2*min(LA,len(seq)-1-i)})')
        b=208-64+4*(i%NBUF)
        if astream and i==0: e('s_nop 1')
        e(f'v_mfma_f32_16x16x32_bf16 {acc(t)}, v[{b}:{b+3}], v[{32+4*s4}:{35+4*s4}], {acc(t)}')
    e(f's_add_u32 s15, s15, {slot}'); e(f's_cmp_ge_u32 s15, {R*slot}'); e('s_cselect_b32 s15, 0, s15')
    e(f's_add_u32 s12, s12, {1024*SPC}'); e(f's_cmp_lt_u32 s12, {1024*SPC*nch}'); e(f's_cbranch_scc1 {name}_L')
    e('s_waitcnt vmcnt(0)')
    e('s_nop 7'); e('s_nop 7')
    def geta(t,r,v):
        e(f'v_accvgpr_read_b32 v{v}, a{4*t+r}' if usea else f'v_mov_b32 v{v}, v{accbase+4*t+r}')
    if epi!='qkv':
        ldc=F*2 if epi=='g' else D*2
        e(f's_mul_i32 s10, s5, {rowb}'); e('v_lshlrev_b32 v241, 3, v254'); e('v_add_u32 v241, s10, v241'); e(f's_movk_i32 s9, {ldc}'); e('v_mad_u32_u24 v240, v255, s9, v241')
        dst={'h':('ws',WS_H),'hh':('ws',WS_HH),'x1':('ws',WS_X1),'g':('ws',WS_G),'out':('out',0)}[epi]
        srd(52,dst[0],M*ldc,dst[1])
        if epi=='h': srd(56,'x',M*D*2)
        if epi=='x1': srd(56,'ws',M*D*2,WS_XB)
        if epi=='out': srd(56,'ws',M*D*2,WS_X1); srd(60,'ws',M*D*2,WS_H)
        for t in range(nt):
            if epi in('h','x1','out'): e(f'v_accvgpr_read_b32 v228, a{64+2*t}'); e(f'v_accvgpr_read_b32 v229, a{65+2*t}')
            if epi=='out': e(f'v_accvgpr_read_b32 v230, a{96+2*t}'); e(f'v_accvgpr_read_b32 v231, a{97+2*t}')
            for r in range(4): geta(t,r,224+r); bfround(224+r)
            if epi in('hh','g'):
                for r in range(4): gelu(224+r,232)
            if epi in('h','x1','out'):
                for p in range(2):
                    unpack(232,228+p); e(f'v_add_f32 v{224+2*p}, v{224+2*p}, v232'); e(f'v_add_f32 v{225+2*p}, v{225+2*p}, v233')
                    if epi=='out':
                        bfround(224+2*p); bfround(225+2*p)
                        unpack(232,230+p); e(f'v_add_f32 v{224+2*p}, v{224+2*p}, v232'); e(f'v_add_f32 v{225+2*p}, v{225+2*p}, v233')
            e('v_cvt_pk_bf16_f32 v224, v224, v225'); e('v_cvt_pk_bf16_f32 v225, v226, v227')
            e(f'buffer_store_dwordx2 v[224:225], v240, s[52:55], 0 offen offset:{32*t}'); e('s_nop 1')
    else:
        srd(52,'ws',M*D*2,WS_PQ)
        e('s_mul_i32 s10, s5, 160'); e('v_lshlrev_b32 v241, 3, v254'); e('v_add_u32 v242, s10, v241'); e('s_movk_i32 s9, 1280'); e('v_mad_u32_u24 v240, v255, s9, v242')
        e('v_lshl_add_u32 v243, s3, 4, v253'); e('s_movk_i32 s9, 320'); e('v_mad_u32_u24 v243, v243, s9, v241')
        e('s_barrier')
        for t in range(15):
            for r in range(4):
                geta(t,r,224+r); bfround(224+r)
                if t<10:
                    v=224+r
                    e(f'v_mul_f32 v232, 0x3fb8aa3b, v{v}'); e('v_exp_f32 v232, v232'); e(f'v_add_f32 v233, 1.0, v{v}')
                    e(f'v_cmp_lt_f32 vcc, 0, v{v}'); e('s_nop 1'); e(f'v_cndmask_b32 v{v}, v232, v233, vcc'); bfround(v); e(f'v_add_f32 v{v}, 0x358637bd, v{v}')
            e('v_cvt_pk_bf16_f32 v224, v224, v225'); e('v_cvt_pk_bf16_f32 v225, v226, v227')
            if t<5: e(f'buffer_store_dwordx2 v[224:225], v240, s[52:55], 0 offen offset:{32*t}')
            else: e(f'ds_write_b64 v243, v[224:225] offset:{32*(t-5)}')
        e('s_waitcnt vmcnt(0) lgkmcnt(0)'); e('s_barrier')
        e('v_lshrrev_b32 v241, 2, v253'); e('v_and_b32 v242, 3, v253'); e('v_lshlrev_b32 v242, 3, v242')
        e('s_mul_i32 s10, s3, 40'); e('v_add_u32 v242, s10, v242')
        for j in range(2):
            e(f'v_lshl_add_u32 v243, v254, 3, v241'); e(f'v_add_u32 v243, {4*j}, v243'); e('s_movk_i32 s9, 320'); e(f'v_mad_u32_u24 v{244+j}, v243, s9, v242')
        for q in range(24): e(f'v_mov_b32 v{q}, 0')
        for q in range(4): e(f'v_mov_b32 v{40+q}, 0x3f803f80')
        for s in range(2):
            for w_,co in ((28,0),(32,32),(36,160),(44,192)):
                e(f'ds_read_b64_tr_b16 v[{w_}:{w_+1}], v244 offset:{s*32*320+co}'); e(f'ds_read_b64_tr_b16 v[{w_+2}:{w_+3}], v245 offset:{s*32*320+co}')
            e('s_waitcnt lgkmcnt(0)')
            for dt in range(2):
                for et,br in enumerate((36,44,40)):
                    a=4*(dt*3+et); e(f'v_mfma_f32_16x16x32_bf16 v[{a}:{a+3}], v[{28+4*dt}:{31+4*dt}], v[{br}:{br+3}], v[{a}:{a+3}]')
        e('s_nop 7'); e('s_nop 7')
        srd(56,'ws',32*32*480*4,WS_KVP)
        e('s_lshl_b32 s10, s5, 2'); e('s_add_u32 s10, s10, s3'); e('s_lshl_b32 s11, s4, 5'); e('s_add_u32 s10, s10, s11'); e('s_mul_i32 s10, s10, 1920')
        e('v_lshlrev_b32 v241, 2, v253'); e('s_movk_i32 s9, 384'); e('v_mad_u32_u24 v241, v254, s9, v241'); e('v_add_u32 v241, s10, v241')
        e('s_mov_b64 s[12:13], exec')
        for dt in range(2):
            for et in range(3):
                a=4*(dt*3+et)
                lim={0:16,1:4,2:1}[et]
                e(f'v_cmp_gt_u32 vcc, {lim}, v253')
                if dt==1: e('v_cmp_eq_u32 s[14:15], 0, v254'); e('s_nop 1'); e('s_and_b64 vcc, vcc, s[14:15]')
                e('s_nop 3'); e('s_mov_b64 exec, vcc')
                for r in range(4):
                    e(f'buffer_store_dword v{a+r}, v241, s[56:59], 0 offen offset:{(dt*16+r)*96+[0,64,80][et]}')
                e('s_mov_b64 exec, s[12:13]')
    tail(name)
def kvo(name):
    head(name); e('s_waitcnt lgkmcnt(0)')
    e('s_lshr_b32 s4, s2, 3'); e('s_and_b32 s5, s2, 7')
    srd(44,'ws',32*32*480*4,WS_KVP); srd(48,'ws',M*D*2,WS_PQ); srd(52,'ws',M*D*2,WS_O)
    e('s_mul_i32 s10, s5, 7680'); e('v_lshlrev_b32 v1, 2, v0')
    for q in range(8): e(f'v_mov_b32 v{8+q}, 0')
    e('v_mov_b32 v3, 0x7ffffff0'); e('v_cmp_gt_u32 vcc, 128, v0'); e('s_nop 1'); e('v_cndmask_b32 v2, v3, v1, vcc')
    for pb in range(4):
        for p8 in range(8):
            p=pb*8+p8
            e(f's_add_u32 s11, s10, {p*32*1920}'); e('s_add_u32 s14, s11, 4096')
            for q in range(8): e(f'buffer_load_dword v{128+8*p8+q}, {"v1" if q<7 else "v2"}, s[44:47], {"s11" if q<4 else "s14"} offen offset:{1024*(q%4)}')
        for p8 in range(8):
            e(f's_waitcnt vmcnt({8*(7-p8)})')
            for q in range(8): e(f'v_add_f32 v{8+q}, v{8+q}, v{128+8*p8+q}')
    for q in range(8):
        bfround(8+q)
        if q==7: e('v_cmp_gt_u32 vcc, 128, v0'); e('s_and_saveexec_b64 s[12:13], vcc')
        e(f'ds_write_b32 v1, v{8+q} offset:{1024*q}')
    e('s_mov_b64 exec, s[12:13]')
    e('v_lshrrev_b32 v2, 2, v0'); e('v_and_b32 v3, 3, v0'); e('s_lshl_b32 s6, s4, 6'); e('v_add_u32 v2, s6, v2')
    e('s_movk_i32 s9, 1280'); e('v_mul_u32_u24 v4, 40, v3'); e('v_mad_u32_u24 v4, v2, s9, v4'); e('s_mul_i32 s10, s5, 160'); e('v_add_u32 v4, s10, v4')
    for q in range(5): e(f'buffer_load_dwordx2 v[{30+2*q}:{31+2*q}], v4, s[48:51], 0 offen offset:{8*q}')
    e('s_movk_i32 s9, 1920'); e('v_mul_lo_u32 v5, v3, s9')
    e('s_waitcnt vmcnt(0) lgkmcnt(0)'); e('s_barrier')
    for q in range(10): unpack(40+2*q,30+q)
    for q in range(24): e(f'v_mov_b32 v{64+q}, 0')
    for d in range(20):
        for q in range(6): e(f'ds_read_b128 v[{100+4*q}:{103+4*q}], v5 offset:{d*96+16*q}')
        e('s_waitcnt lgkmcnt(0)')
        for q in range(21): e(f'v_fmac_f32 v{64+q}, v{40+d}, v{100+q}')
    bfround(84); e('v_add_f32 v84, 0x358637bd, v84'); bfround(84); e('v_rcp_f32 v84, v84'); e('s_nop 0')
    for q in range(20): bfround(64+q); e(f'v_mul_f32 v{64+q}, v{64+q}, v84')
    for q in range(10): e(f'v_cvt_pk_bf16_f32 v{30+q}, v{64+2*q}, v{65+2*q}')
    for q in range(5): e(f'buffer_store_dwordx2 v[{30+2*q}:{31+2*q}], v4, s[52:55], 0 offen offset:{8*q}')
    tail(name)
ks=[('k1_kernel',lambda n:gemm(n,640,15,'x',0,1280,'ln','wqkv',3840,'qkv')),
    ('k1b_kernel',kvo),
    ('k2_kernel',lambda n:gemm(n,640,5,'ws',WS_O,1280,'plain','wo',1280,'h')),
    ('k3_kernel',lambda n:gemm(n,640,5,'ws',WS_H,1280,'ln2','w1',1280,'hh')),
    ('k4_kernel',lambda n:gemm(n,640,5,'ws',WS_HH,1280,'shift','w2',1280,'x1')),
    ('k5_kernel',lambda n:gemm(n,640,12,'ws',WS_X1,1280,'ln','w3',3072,'g')),
    ('k6_kernel',lambda n:gemm(n,1536,5,'ws',WS_G,3072,'plain','w4',1280,'out'))]
hdr=[f'; @launch kernel={n} grid=(256,1,1) block=(256,1,1) lds=153600' for n,_ in ks]
e('.amdgcn_target "amdgcn-amd-amdhsa--gfx950"'); e('.text')
for n,f in ks: f(n)
e('.section .rodata,"a"')
for n,_ in ks:
    e('.p2align 6'); e(f'.amdhsa_kernel {n}')
    for l in ['next_free_vgpr 512','next_free_sgpr 102','accum_offset 256','group_segment_fixed_size 0','kernarg_size 88','user_sgpr_count 2','user_sgpr_kernarg_segment_ptr 1','system_sgpr_workgroup_id_x 1']: e('  .amdhsa_'+l)
    e('.end_amdhsa_kernel')
open(f'cdna_kernels/{NAME}.s','w').write('\n'.join(hdr+out)+'\n')
```

```python
import sys
NAME='sequential_preLN__linear_attn_block__mixer_s_mlp__prompt'
M=2048; D=640; F=1536
WS_PQ=0; WS_O=WS_PQ+M*D*2; WS_H=WS_O+M*D*2; WS_XB=WS_H+M*D*2; WS_HH=WS_XB+M*D*2
WS_X1=WS_HH+M*D*2; WS_G=WS_X1+M*D*2; WS_KVP=WS_G+M*F*2
out=[]
def e(s): out.append(s)
PTR={'x':16,'wqkv':18,'wo':20,'w1':24,'w2':26,'w3':28,'w4':30,'out':32,'ws':36}
def srd(r,ptr,nbytes,off=0):
    p=PTR[ptr]
    if off:
        e(f's_add_u32 s{r}, s{p}, {off}'); e(f's_addc_u32 s{r+1}, s{p+1}, 0')
    else:
        e(f's_mov_b32 s{r}, s{p}'); e(f's_mov_b32 s{r+1}, s{p+1}')
    e(f's_mov_b32 s{r+2}, {nbytes}'); e(f's_mov_b32 s{r+3}, 0x00020000')
def head(name):
    e('.p2align 8'); e(f'.globl {name}'); e(f'.type {name},@function'); e(f'{name}:')
    e('s_cmp_ge_u32 s2, 256'); e(f's_cbranch_scc1 {name}_end')
    e('s_load_dwordx16 s[16:31], s[0:1], 0'); e('s_load_dwordx4 s[32:35], s[0:1], 64'); e('s_load_dwordx2 s[36:37], s[0:1], 80')
import os
STAMP=os.environ.get('STAMP')
def stamp(i):
    if not STAMP: return
    e(f's_memtime s[96:97]'); e('s_waitcnt lgkmcnt(0)'); e(f'v_mov_b32 v239, s96'); e(f'v_accvgpr_write_b32 a{120+i}, v239')
def stampout():
    if not STAMP: return
    e('s_mov_b32 s92, s34'); e('s_mov_b32 s93, s35'); e('s_mov_b32 s94, 256'); e('s_mov_b32 s95, 0x00020000')
    e('v_mov_b32 v238, 0'); e('s_cmp_eq_u32 s2, 37'); e('s_cselect_b32 s94, 256, 0')
    for i in range(6): e(f'v_accvgpr_read_b32 v239, a{120+i}'); e(f'buffer_store_dword v239, v238, s[92:95], 0 offen offset:{4*i}')
def tail(name):
    stamp(5); stampout()
    e(f'{name}_end:'); e('s_endpgm')
def bfround(v,tmp=None):
    e(f'v_cvt_pk_bf16_f32 v{v}, v{v}, v{v}'); e(f'v_and_b32 v{v}, 0xffff0000, v{v}')
def unpack(dst,src):
    e(f'v_lshlrev_b32 v{dst}, 16, v{src}'); e(f'v_and_b32 v{dst+1}, 0xffff0000, v{src}')
def xreduce(v,tmp):
    for a in (250,251):
        e(f'ds_bpermute_b32 v{tmp}, v{a}, v{v}'); e('s_waitcnt lgkmcnt(0)'); e(f'v_add_f32 v{v}, v{v}, v{tmp}')
def gelu(v,t):
    e(f'v_mul_f32 v{t}, v{v}, v{v}'); e(f'v_fma_f32 v{t}, v{t}, s40, 1.0'); e(f'v_mul_f32 v{t}, v{t}, v{v}')
    e(f'v_mul_f32 v{t}, s41, v{t}'); e(f'v_exp_f32 v{t}, v{t}'); e('s_nop 0'); e(f'v_add_f32 v{t}, 1.0, v{t}')
    e(f'v_rcp_f32 v{t}, v{t}'); e('s_nop 0'); e(f'v_mul_f32 v{v}, v{v}, v{t}')
def ln_loop(name,tag,save=False):
    if tag.endswith('x'):
        e('v_mov_b32 v240, 0'); e('v_mov_b32 v241, 0'); e('s_mov_b32 s9, 0'); e(f'{name}_{tag}s:')
        e('v_add_u32 v237, s9, v236')
        for u in range(4): e(f'ds_read_b128 v[{4*u}:{4*u+3}], v237 offset:{1024*u}')
        e('s_waitcnt lgkmcnt(0)')
        for i in range(16):
            unpack(242,i); e('v_add_f32 v240, v240, v242'); e('v_add_f32 v240, v240, v243'); e('v_fmac_f32 v241, v242, v242'); e('v_fmac_f32 v241, v243, v243')
        e('s_add_u32 s9, s9, 4096'); e('s_cmp_lt_u32 s9, 20480'); e(f's_cbranch_scc1 {name}_{tag}s')
    xreduce(240,244); xreduce(241,244); e('v_mul_f32 v240, s42, v240'); e('v_mul_f32 v241, s42, v241'); e('v_fma_f32 v241, -v240, v240, v241'); e('v_max_f32 v241, 0, v241')
    bfround(240); bfround(241); e('v_add_f32 v241, 0x3727c5ac, v241'); bfround(241)
    e('v_sqrt_f32 v241, v241'); e('s_nop 0'); bfround(241); e('v_rcp_f32 v241, v241'); e('s_mov_b32 s9, 0'); e(f'{name}_{tag}n:')
    e('v_add_u32 v237, s9, v236')
    for u in range(4): e(f'ds_read_b128 v[{4*u}:{4*u+3}], v237 offset:{1024*u}')
    e('s_waitcnt lgkmcnt(0)')
    for i in range(16):
        unpack(242,i); e('v_sub_f32 v242, v242, v240'); e('v_sub_f32 v243, v243, v240')
        e('v_cvt_pk_bf16_f32 v244, v242, v243'); unpack(242,244)
        e('v_mul_f32 v242, v242, v241'); e('v_mul_f32 v243, v243, v241'); e(f'v_cvt_pk_bf16_f32 v{i}, v242, v243')
    for u in range(4): e(f'ds_write_b128 v237, v[{4*u}:{4*u+3}] offset:{1024*u}')
    if save:
        e('s_lshr_b32 s12, s9, 4'); e('v_add_u32 v246, s12, v248'); e('v_add_u32 v247, s12, v249')
        for u in range(4):
            e(f'buffer_store_dwordx2 v[{4*u}:{4*u+1}], v246, s[52:55], 0 offen offset:{64*u}'); e(f'buffer_store_dwordx2 v[{4*u+2}:{4*u+3}], v247, s[52:55], 0 offen offset:{64*u}')
    e('s_add_u32 s9, s9, 4096'); e('s_cmp_lt_u32 s9, 20480'); e(f's_cbranch_scc1 {name}_{tag}n'); e('s_waitcnt lgkmcnt(0)')
def consts():
    e('s_mov_b32 s40, 0x3d372713'); e('s_mov_b32 s41, 0xc0135761'); e(f's_mov_b32 s42, 0x{0x3acccccd:x}')
def gemm(name,K,nt,Aptr,Aoff,lda,amode,Bptr,ldb,epi,NB=8):
    import struct
    usea=True; acc=lambda t:f'a[{4*t}:{4*t+3}]'; accbase=0
    rowb=32*nt; CH=64 if nt>=12 else 128; SPC=CH//32; nch=K//CH; cnt=-(-CH*rowb//4096); slot=cnt*4096
    astream=K>640; ALDS=0 if astream else 81920; R=(153600-ALDS)//slot; R=min(R,4)
    head(name); consts()
    e('v_and_b32 v252, 63, v0'); e('v_lshrrev_b32 v253, 6, v0'); e('s_nop 0'); e('v_readfirstlane_b32 s3, v253')
    e('v_and_b32 v253, 15, v252'); e('v_lshrrev_b32 v254, 4, v252')
    e('v_xor_b32 v250, 16, v252'); e('v_lshlrev_b32 v250, 2, v250'); e('v_xor_b32 v251, 32, v252'); e('v_lshlrev_b32 v251, 2, v251')
    e('s_and_b32 s4, s2, 7'); e('s_lshl_b32 s4, s4, 2'); e('s_lshr_b32 s5, s2, 3'); e('s_and_b32 s6, s5, 3'); e('s_add_u32 s4, s4, s6'); e('s_lshr_b32 s5, s5, 2')
    e('s_lshl_b32 s6, s4, 6'); e('s_lshl_b32 s7, s3, 4'); e('s_add_u32 s6, s6, s7'); e('v_add_u32 v255, s6, v253')
    e('s_waitcnt lgkmcnt(0)')
    stamp(0); srd(44,Aptr,M*lda,Aoff); srd(48,Bptr,K*ldb)
    BO=192
    for i in range(cnt):
        e(f's_mul_i32 s8, s3, {cnt*1024}'); e(f'v_lshlrev_b32 v240, 4, v252'); e(f'v_add_u32 v240, s8, v240'); e(f'v_add_u32 v240, {i*1024}, v240')
        e(f'v_cvt_f32_u32 v241, v240'); e(f's_mov_b32 s9, 0x{struct.unpack("<I",struct.pack("<f",1.0/rowb))[0]:x}')
        e('v_add_f32 v241, 0.5, v241'); e('v_mul_f32 v241, s9, v241'); e('v_cvt_u32_f32 v241, v241')
        e(f's_movk_i32 s9, {rowb}'); e('v_mul_lo_u32 v242, v241, s9'); e('v_sub_u32 v242, v240, v242')
        if epi=='qkv':
            e('v_cmp_le_u32 vcc, 160, v242'); e('s_nop 1'); e('v_cndmask_b32 v243, 0, 1, vcc'); e('v_cmp_le_u32 vcc, 320, v242'); e('s_nop 1'); e('v_addc_co_u32 v243, vcc, 0, v243, vcc')
            e('s_movk_i32 s9, 1120'); e('v_mad_u32_u24 v242, v243, s9, v242')
        e(f's_movk_i32 s9, {ldb}'); e(f'v_mad_u32_u24 v{BO+i}, v241, s9, v242')
    e(f's_mul_i32 s10, s5, {160 if epi=="qkv" else rowb}')
    e(f's_mul_i32 s13, s3, {cnt*1024}'); e(f's_add_u32 s13, s13, {ALDS}')
    e('s_mov_b32 s14, 0')
    def dma():
        for i in range(cnt):
            e(f's_add_u32 s8, s13, s14'); e(f's_add_u32 m0, s8, {i*1024}'); e('s_nop 0')
            e(f'buffer_load_dwordx4 v{BO+i}, s[48:51], s10 offen lds')
        e(f's_add_u32 s10, s10, {CH*ldb}'); e(f's_add_u32 s14, s14, {slot}'); e(f's_cmp_ge_u32 s14, {R*slot}'); e('s_cselect_b32 s14, 0, s14')
    e('v_and_b32 v240, 1, v254')
    for j in range(2):
        e(f'v_mov_b32 v241, {8*j}'); e('v_lshl_add_u32 v241, v254, 4, v241')
        e(f's_movk_i32 s9, {lda}'); e(f'v_mad_u32_u24 v{248+j}, v255, s9, v241')
    if epi in('h','x1','out'):
        e(f's_mul_i32 s12, s5, {rowb}'); e('v_lshlrev_b32 v241, 3, v254'); e('v_add_u32 v241, s12, v241'); e(f's_movk_i32 s9, 1280'); e('v_mad_u32_u24 v240, v255, s9, v241')
        if epi=='h': srd(56,'x',M*D*2)
        if epi=='x1': srd(56,'ws',M*D*2,WS_XB)
        if epi=='out': srd(56,'ws',M*D*2,WS_X1); srd(60,'ws',M*D*2,WS_H)
        for t in range(nt):
            e(f'buffer_load_dwordx2 a[{64+2*t}:{65+2*t}], v240, s[56:59], 0 offen offset:{32*t}')
            if epi=='out': e(f'buffer_load_dwordx2 a[{96+2*t}:{97+2*t}], v240, s[60:63], 0 offen offset:{32*t}')
    for t in range(4*nt): e(f'v_accvgpr_write_b32 a{t}, 0')
    e('v_lshlrev_b32 v236, 4, v252'); e('s_mul_i32 s8, s3, 20480'); e('v_add_u32 v236, s8, v236')
    if not astream:
        for s_ in range(20):
            sh=[-1,1,-2,2][s_//5]*lda if amode=='shift' else 0
            if sh<0: e(f'v_subrev_u32 v246, {-sh}, v248'); e(f'v_subrev_u32 v247, {-sh}, v249'); a0,a1,o=246,247,0
            else: a0,a1,o=248,249,sh
            e(f's_mul_i32 s8, s3, 20480'); e(f's_add_u32 m0, s8, {1024*s_}'); e(f's_movk_i32 s9, {64*s_+o}')
            e(f'buffer_load_dwordx4 v{a0}, s[44:47], s9 offen lds')
        for c in range(R-1): dma()
        e('v_mov_b32 v240, 0'); e('v_mov_b32 v241, 0'); e(f's_waitcnt vmcnt({(R-1)*cnt})')
        stamp(1)
        e('s_waitcnt lgkmcnt(0)')
        if amode in('ln','ln2'):
            if amode=='ln2':
                srd(52,'ws',M*D*2,WS_XB); e('s_cmp_eq_u32 s5, 0'); e('s_cselect_b32 s54, s54, 0')
            ln_loop(name,'ax',save=(amode=='ln2'))
            if amode=='ln2': ln_loop(name,'bx')
    else:
        for c in range(R-1): dma()
        for u in range(SPC):
            e(f'buffer_load_dwordx4 v[{4*u}:{4*u+3}], v248, s[44:47], 0 offen offset:{64*u}')
    e('v_and_b32 v240, 1, v254'); e('v_lshrrev_b32 v241, 2, v253'); e('v_and_b32 v242, 3, v253'); e('v_lshlrev_b32 v242, 3, v242'); e(f'v_add_u32 v242, {ALDS}, v242')
    for j in range(2):
        e(f'v_mov_b32 v243, {4*j}'); e('v_lshl_add_u32 v243, v254, 3, v243'); e('v_add_u32 v243, v243, v241')
        e(f's_movk_i32 s9, {rowb}'); e(f'v_mad_u32_u24 v{244+j}, v243, s9, v242')
    stamp(2); e('s_mov_b32 s15, 0'); e('s_mov_b32 s12, 0')
    e(f'{name}_L:')
    e(f's_waitcnt vmcnt({0 if astream else (R-2)*cnt})'); e('s_barrier')
    if astream:
        for u in range(SPC): e(f'v_mov_b32 v{32+4*u}, v{4*u}'); e(f'v_mov_b32 v{33+4*u}, v{4*u+1}'); e(f'v_mov_b32 v{34+4*u}, v{4*u+2}'); e(f'v_mov_b32 v{35+4*u}, v{4*u+3}')
        e(f'v_add_u32 v248, {CH*2}, v248'); e(f'v_add_u32 v249, {CH*2}, v249')
        for u in range(SPC):
            e(f'buffer_load_dwordx4 v[{4*u}:{4*u+3}], v248, s[44:47], 0 offen offset:{64*u}')
    dma()
    e('v_add_u32 v246, s15, v244'); e('v_add_u32 v247, s15, v245')
    if not astream:
        e('v_add_u32 v237, s12, v236')
        for u in range(SPC): e(f'ds_read_b128 v[{32+4*u}:{35+4*u}], v237 offset:{1024*u}')
    seq=[(s4,t) for s4 in range(SPC) for t in range(nt)]; LA=5; NBUF=7
    def rd(i):
        s4,t=seq[i]; b=208-64+4*(i%NBUF)
        e(f'ds_read_b64_tr_b16 v[{b}:{b+1}], v246 offset:{s4*32*rowb+t*32}'); e(f'ds_read_b64_tr_b16 v[{b+2}:{b+3}], v247 offset:{s4*32*rowb+t*32}')
    for i in range(LA): rd(i)
    for i,(s4,t) in enumerate(seq):
        if i+LA<len(seq): rd(i+LA)
        e(f's_waitcnt lgkmcnt({2*min(LA,len(seq)-1-i)})')
        b=208-64+4*(i%NBUF)
        if astream and i==0: e('s_nop 1')
        e(f'v_mfma_f32_16x16x32_bf16 {acc(t)}, v[{b}:{b+3}], v[{32+4*s4}:{35+4*s4}], {acc(t)}')
    e(f's_add_u32 s15, s15, {slot}'); e(f's_cmp_ge_u32 s15, {R*slot}'); e('s_cselect_b32 s15, 0, s15')
    e(f's_add_u32 s12, s12, {1024*SPC}'); e(f's_cmp_lt_u32 s12, {1024*SPC*nch}'); e(f's_cbranch_scc1 {name}_L')
    e('s_waitcnt vmcnt(0)')
    stamp(3); e('s_nop 7'); e('s_nop 7')
    def geta(t,r,v):
        e(f'v_accvgpr_read_b32 v{v}, a{4*t+r}' if usea else f'v_mov_b32 v{v}, v{accbase+4*t+r}')
    if epi!='qkv':
        ldc=F*2 if epi=='g' else D*2
        e(f's_mul_i32 s10, s5, {rowb}'); e('v_lshlrev_b32 v241, 3, v254'); e('v_add_u32 v241, s10, v241'); e(f's_movk_i32 s9, {ldc}'); e('v_mad_u32_u24 v240, v255, s9, v241')
        dst={'h':('ws',WS_H),'hh':('ws',WS_HH),'x1':('ws',WS_X1),'g':('ws',WS_G),'out':('out',0)}[epi]
        srd(52,dst[0],M*ldc,dst[1])
        if epi=='h': srd(56,'x',M*D*2)
        if epi=='x1': srd(56,'ws',M*D*2,WS_XB)
        if epi=='out': srd(56,'ws',M*D*2,WS_X1); srd(60,'ws',M*D*2,WS_H)
        for t in range(nt):
            if epi in('h','x1','out'): e(f'v_accvgpr_read_b32 v228, a{64+2*t}'); e(f'v_accvgpr_read_b32 v229, a{65+2*t}')
            if epi=='out': e(f'v_accvgpr_read_b32 v230, a{96+2*t}'); e(f'v_accvgpr_read_b32 v231, a{97+2*t}')
            for r in range(4): geta(t,r,224+r); bfround(224+r)
            if epi in('hh','g'):
                for r in range(4): gelu(224+r,232)
            if epi in('h','x1','out'):
                for p in range(2):
                    unpack(232,228+p); e(f'v_add_f32 v{224+2*p}, v{224+2*p}, v232'); e(f'v_add_f32 v{225+2*p}, v{225+2*p}, v233')
                    if epi=='out':
                        bfround(224+2*p); bfround(225+2*p)
                        unpack(232,230+p); e(f'v_add_f32 v{224+2*p}, v{224+2*p}, v232'); e(f'v_add_f32 v{225+2*p}, v{225+2*p}, v233')
            e('v_cvt_pk_bf16_f32 v224, v224, v225'); e('v_cvt_pk_bf16_f32 v225, v226, v227')
            e(f'buffer_store_dwordx2 v[224:225], v240, s[52:55], 0 offen offset:{32*t}'); e('s_nop 1')
    else:
        srd(52,'ws',M*D*2,WS_PQ)
        e('s_mul_i32 s10, s5, 160'); e('v_lshlrev_b32 v241, 3, v254'); e('v_add_u32 v242, s10, v241'); e('s_movk_i32 s9, 1280'); e('v_mad_u32_u24 v240, v255, s9, v242')
        e('v_lshl_add_u32 v243, s3, 4, v253'); e('s_movk_i32 s9, 320'); e('v_mad_u32_u24 v243, v243, s9, v241')
        e('s_barrier')
        for t in range(15):
            for r in range(4):
                geta(t,r,224+r); bfround(224+r)
                if t<10:
                    v=224+r
                    e(f'v_mul_f32 v232, 0x3fb8aa3b, v{v}'); e('v_exp_f32 v232, v232'); e(f'v_add_f32 v233, 1.0, v{v}')
                    e(f'v_cmp_lt_f32 vcc, 0, v{v}'); e('s_nop 1'); e(f'v_cndmask_b32 v{v}, v232, v233, vcc'); bfround(v); e(f'v_add_f32 v{v}, 0x358637bd, v{v}')
            e('v_cvt_pk_bf16_f32 v224, v224, v225'); e('v_cvt_pk_bf16_f32 v225, v226, v227')
            if t<5: e(f'buffer_store_dwordx2 v[224:225], v240, s[52:55], 0 offen offset:{32*t}')
            else: e(f'ds_write_b64 v243, v[224:225] offset:{32*(t-5)}')
        e('s_waitcnt vmcnt(0) lgkmcnt(0)'); e('s_barrier')
        e('v_lshrrev_b32 v241, 2, v253'); e('v_and_b32 v242, 3, v253'); e('v_lshlrev_b32 v242, 3, v242')
        e('s_mul_i32 s10, s3, 40'); e('v_add_u32 v242, s10, v242')
        for j in range(2):
            e(f'v_lshl_add_u32 v243, v254, 3, v241'); e(f'v_add_u32 v243, {4*j}, v243'); e('s_movk_i32 s9, 320'); e(f'v_mad_u32_u24 v{244+j}, v243, s9, v242')
        for q in range(24): e(f'v_mov_b32 v{q}, 0')
        for q in range(4): e(f'v_mov_b32 v{40+q}, 0x3f803f80')
        for s in range(2):
            for w_,co in ((28,0),(32,32),(36,160),(44,192)):
                e(f'ds_read_b64_tr_b16 v[{w_}:{w_+1}], v244 offset:{s*32*320+co}'); e(f'ds_read_b64_tr_b16 v[{w_+2}:{w_+3}], v245 offset:{s*32*320+co}')
            e('s_waitcnt lgkmcnt(0)')
            for dt in range(2):
                for et,br in enumerate((36,44,40)):
                    a=4*(dt*3+et); e(f'v_mfma_f32_16x16x32_bf16 v[{a}:{a+3}], v[{28+4*dt}:{31+4*dt}], v[{br}:{br+3}], v[{a}:{a+3}]')
        e('s_nop 7'); e('s_nop 7')
        srd(56,'ws',32*32*480*4,WS_KVP)
        e('s_lshl_b32 s10, s5, 2'); e('s_add_u32 s10, s10, s3'); e('s_lshl_b32 s11, s4, 5'); e('s_add_u32 s10, s10, s11'); e('s_mul_i32 s10, s10, 1920')
        e('v_lshlrev_b32 v241, 2, v253'); e('s_movk_i32 s9, 384'); e('v_mad_u32_u24 v241, v254, s9, v241'); e('v_add_u32 v241, s10, v241')
        e('s_mov_b64 s[12:13], exec')
        for dt in range(2):
            for et in range(3):
                a=4*(dt*3+et)
                lim={0:16,1:4,2:1}[et]
                e(f'v_cmp_gt_u32 vcc, {lim}, v253')
                if dt==1: e('v_cmp_eq_u32 s[14:15], 0, v254'); e('s_nop 1'); e('s_and_b64 vcc, vcc, s[14:15]')
                e('s_nop 3'); e('s_mov_b64 exec, vcc')
                for r in range(4):
                    e(f'buffer_store_dword v{a+r}, v241, s[56:59], 0 offen offset:{(dt*16+r)*96+[0,64,80][et]}')
                e('s_mov_b64 exec, s[12:13]')
    tail(name)
def kvo(name):
    head(name); e('s_waitcnt lgkmcnt(0)')
    e('s_and_b32 s4, s2, 7'); e('s_lshl_b32 s4, s4, 2'); e('s_lshr_b32 s5, s2, 3'); e('s_and_b32 s6, s5, 3'); e('s_add_u32 s4, s4, s6'); e('s_lshr_b32 s5, s5, 2')
    srd(44,'ws',32*32*480*4,WS_KVP); srd(48,'ws',M*D*2,WS_PQ); srd(52,'ws',M*D*2,WS_O)
    e('s_mul_i32 s10, s5, 7680'); e('v_lshlrev_b32 v1, 2, v0')
    for q in range(8): e(f'v_mov_b32 v{8+q}, 0')
    e('v_mov_b32 v3, 0x7ffffff0'); e('v_cmp_gt_u32 vcc, 128, v0'); e('s_nop 1'); e('v_cndmask_b32 v2, v3, v1, vcc')
    for pb in range(4):
        for p8 in range(8):
            p=pb*8+p8
            e(f's_add_u32 s11, s10, {p*32*1920}'); e('s_add_u32 s14, s11, 4096')
            for q in range(8): e(f'buffer_load_dword v{128+8*p8+q}, {"v1" if q<7 else "v2"}, s[44:47], {"s11" if q<4 else "s14"} offen offset:{1024*(q%4)}')
        for p8 in range(8):
            e(f's_waitcnt vmcnt({8*(7-p8)})')
            for q in range(8): e(f'v_add_f32 v{8+q}, v{8+q}, v{128+8*p8+q}')
    for q in range(8):
        bfround(8+q)
        if q==7: e('v_cmp_gt_u32 vcc, 128, v0'); e('s_and_saveexec_b64 s[12:13], vcc')
        e(f'ds_write_b32 v1, v{8+q} offset:{1024*q}')
    e('s_mov_b64 exec, s[12:13]')
    e('v_lshrrev_b32 v2, 2, v0'); e('v_and_b32 v3, 3, v0'); e('s_lshl_b32 s6, s4, 6'); e('v_add_u32 v2, s6, v2')
    e('s_movk_i32 s9, 1280'); e('v_mul_u32_u24 v4, 40, v3'); e('v_mad_u32_u24 v4, v2, s9, v4'); e('s_mul_i32 s10, s5, 160'); e('v_add_u32 v4, s10, v4')
    for q in range(5): e(f'buffer_load_dwordx2 v[{30+2*q}:{31+2*q}], v4, s[48:51], 0 offen offset:{8*q}')
    e('s_movk_i32 s9, 1920'); e('v_mul_lo_u32 v5, v3, s9')
    e('s_waitcnt vmcnt(0) lgkmcnt(0)'); e('s_barrier')
    for q in range(10): unpack(40+2*q,30+q)
    for q in range(24): e(f'v_mov_b32 v{64+q}, 0')
    for d in range(20):
        for q in range(6): e(f'ds_read_b128 v[{100+4*q}:{103+4*q}], v5 offset:{d*96+16*q}')
        e('s_waitcnt lgkmcnt(0)')
        for q in range(21): e(f'v_fmac_f32 v{64+q}, v{40+d}, v{100+q}')
    bfround(84); e('v_add_f32 v84, 0x358637bd, v84'); bfround(84); e('v_rcp_f32 v84, v84'); e('s_nop 0')
    for q in range(20): bfround(64+q); e(f'v_mul_f32 v{64+q}, v{64+q}, v84')
    for q in range(10): e(f'v_cvt_pk_bf16_f32 v{30+q}, v{64+2*q}, v{65+2*q}')
    for q in range(5): e(f'buffer_store_dwordx2 v[{30+2*q}:{31+2*q}], v4, s[52:55], 0 offen offset:{8*q}')
    tail(name)
ks=[('k1_kernel',lambda n:gemm(n,640,15,'x',0,1280,'ln','wqkv',3840,'qkv')),
    ('k1b_kernel',kvo),
    ('k2_kernel',lambda n:gemm(n,640,5,'ws',WS_O,1280,'plain','wo',1280,'h')),
    ('k3_kernel',lambda n:gemm(n,640,5,'ws',WS_H,1280,'ln2','w1',1280,'hh')),
    ('k4_kernel',lambda n:gemm(n,640,5,'ws',WS_HH,1280,'shift','w2',1280,'x1')),
    ('k5_kernel',lambda n:gemm(n,640,12,'ws',WS_X1,1280,'ln','w3',3072,'g')),
    ('k6_kernel',lambda n:gemm(n,1536,5,'ws',WS_G,3072,'plain','w4',1280,'out'))]
hdr=[f'; @launch kernel={n} grid=(256,1,1) block=(256,1,1) lds=153600' for n,_ in ks]
e('.amdgcn_target "amdgcn-amd-amdhsa--gfx950"'); e('.text')
for n,f in ks: f(n)
e('.section .rodata,"a"')
for n,_ in ks:
    e('.p2align 6'); e(f'.amdhsa_kernel {n}')
    for l in ['next_free_vgpr 512','next_free_sgpr 102','accum_offset 256','group_segment_fixed_size 0','kernarg_size 88','user_sgpr_count 2','user_sgpr_kernarg_segment_ptr 1','system_sgpr_workgroup_id_x 1']: e('  .amdhsa_'+l)
    e('.end_amdhsa_kernel')
open(f'cdna_kernels/{NAME}.s','w').write('\n'.join(hdr+out)+'\n')
```
